```python
import torch

def _softmax(x, axis=-1):
    return torch.softmax(x, dim=axis)
def _gelu(x):
    return torch.nn.functional.gelu(x, approximate="tanh")
def _silu(x):
    return torch.nn.functional.silu(x)
def _sigmoid(x):
    return torch.sigmoid(x)
def _layernorm(x, axis=-1, eps=1e-5):
    m = x.mean(dim=axis, keepdim=True)
    v = x.var(dim=axis, keepdim=True, unbiased=False)
    return (x - m) / torch.sqrt(v + eps)
def _scatter_add(tgt, idx, src, axis=0):
    return tgt.clone().index_add_(axis, idx, src)
def _segment_sum(src, seg, n):
    out = torch.zeros((n,) + src.shape[1:], dtype=src.dtype)
    return out.index_add_(0, seg, src)
def _pad(x, pw):
    flat = tuple(v for pair in reversed(pw) for v in pair)
    return torch.nn.functional.pad(x, flat)

kernel_name = 'recurrent_scan__mha_block_cached__swiglu_ffn__decode'

def setup_inputs():

    _w = (lambda a: (lambda t: t.to(torch.bfloat16) if t.is_floating_point() else t)(torch.as_tensor(a)))
    def _A_setup():
        B, Sq, D = 4, 1, 512
        H, Sk, Dh = 32, 8192, 128
        return {
            "x": _w((lambda *s: torch.randn(*s, dtype=torch.bfloat16) * 0.05)(B, Sq, D)),
            "k_cache": _w((lambda *s: torch.randn(*s, dtype=torch.bfloat16) * 1.6)(B, H, Sk, Dh)),
            "v_cache": _w((lambda *s: torch.randn(*s, dtype=torch.bfloat16) * 0.2)(B, H, Sk, Dh)),
            "wq": _w((lambda *s: torch.randn(*s, dtype=torch.bfloat16) * 1.6)(D, H * Dh) * (D ** -0.5)),
            "wo": _w((lambda *s: torch.randn(*s, dtype=torch.bfloat16) * 0.2)(H * Dh, D) * ((H * Dh) ** -0.5)),
        }
    _A_in = _A_setup()

    def _B_setup():
        B, S, D, F = 4, 1, 512, 1792
        return {
            "x": _w((lambda *s: torch.randn(*s, dtype=torch.bfloat16) * 0.05)(B, S, D)),
            "w_gate": _w((lambda *s: torch.randn(*s, dtype=torch.bfloat16) * 0.1)(D, F)),
            "w_up": _w((lambda *s: torch.randn(*s, dtype=torch.bfloat16) * 0.1)(D, F)),
            "w_down": _w((lambda *s: torch.randn(*s, dtype=torch.bfloat16) * 0.1)(F, D)),
        }
    _B_in = _B_setup()

    return {
        "A_x": _A_in["x"],
        "A_k_cache": _A_in["k_cache"],
        "A_v_cache": _A_in["v_cache"],
        "A_wq": _A_in["wq"],
        "A_wo": _A_in["wo"],
        "B_x": _B_in["x"],
        "B_w_gate": _B_in["w_gate"],
        "B_w_up": _B_in["w_up"],
        "B_w_down": _B_in["w_down"],
    }

def reference(A_x, A_k_cache, A_v_cache, A_wq, A_wo, B_x, B_w_gate, B_w_up, B_w_down):
    def _A_ref(x, k_cache, v_cache, wq, wo):
        B, Sq, D = x.shape
        H, Dh = 32, 128
        q = (lambda x, *d: x.permute(*d))((x @ wq).reshape(B, Sq, H, Dh), 0, 2, 1, 3)
        scores = torch.einsum("bhqd,bhkd->bhqk", q, k_cache) * (Dh ** -0.5)
        p = _softmax(scores, axis=-1)
        o = torch.einsum("bhqk,bhkd->bhqd", p, v_cache)
        return (lambda x, *d: x.permute(*d))(o, 0, 2, 1, 3).reshape(B, Sq, H * Dh) @ wo

    def _B_ref(x, w_gate, w_up, w_down):
        g = _silu(x @ w_gate)
        u = x @ w_up
        return (g * u) @ w_down

    x = A_x
    xn = _layernorm(x, axis=-1)
    s = _A_ref(xn, A_k_cache, A_v_cache, A_wq, A_wo)
    g = _silu(_B_ref(xn, B_w_gate, B_w_up, B_w_down))
    return x + s * g
```

```python
import re

TRANS = ("v_exp_f32", "v_log_f32", "v_rcp_f32", "v_rsq_f32", "v_sqrt_f32", "v_sin_f32", "v_cos_f32", "v_rcp_iflag_f32")
_reg = re.compile(r"^(-|\|)?(abs\()?([vsa])(\d+)\)?\|?$")
_rng = re.compile(r"^(-)?([vsa])\[(\d+):(\d+)\]$")

def regs_of(op):
    op = op.strip()
    m = _rng.match(op)
    if m:
        return {(m.group(2), i) for i in range(int(m.group(3)), int(m.group(4)) + 1)}
    m = _reg.match(op)
    if m:
        return {(m.group(3), int(m.group(4)))}
    if op == "vcc":
        return {("s", "vcc")}
    if op == "exec":
        return {("s", "exec")}
    if op == "m0":
        return {("s", "m0")}
    return set()

class Ins:
    def __init__(self, text):
        self.text = text
        t = text.split(";")[0].strip()
        self.label = t.endswith(":")
        self.directive = t.startswith(".") or t == ""
        if self.label or self.directive:
            self.op = None
            return
        parts = t.split(None, 1)
        self.op = parts[0]
        rest = parts[1] if len(parts) > 1 else ""
        ops = []
        cur = ""
        depth = 0
        for ch in rest:
            if ch == "[" or ch == "(":
                depth += 1
            if ch == "]" or ch == ")":
                depth -= 1
            if ch == "," and depth == 0:
                ops.append(cur.strip()); cur = ""
            else:
                cur += ch
        if cur.strip():
            ops.append(cur.strip())
        mods = ""
        if ops:
            sp = ops[-1].split(None, 1)
            ops[-1] = sp[0]
            mods = sp[1] if len(sp) > 1 else ""
        self.ops = ops
        self.mods = mods
        op = self.op
        self.mfma = op.startswith("v_mfma")
        self.valu = op.startswith("v_") and not self.mfma
        self.trans = any(op.startswith(x) for x in TRANS)
        self.dpp = self.valu and ("_dpp" in op or "row_" in mods or "quad_perm" in mods)
        self.permlane = op.startswith("v_permlane")
        self.readlane = op.startswith("v_readlane") or op.startswith("v_readfirstlane")
        self.vmem = op.startswith("buffer_") or op.startswith("global_") or op.startswith("flat_")
        self.ds = op.startswith("ds_")
        self.salu = op.startswith("s_")
        self.states = 1
        if op == "s_nop":
            self.states = int(ops[0], 0) + 1
        R = [regs_of(o) for o in ops]
        W = set(); Rd = set()
        self.A = self.B = self.C = set()
        self.store_wide = set()
        if self.mfma:
            W = R[0]; self.A, self.B, self.C = R[1], R[2], R[3]; Rd = R[1] | R[2] | R[3]
            self.passes = 4 if "16x16x32" in op or "16x16x16" in op else 8
        elif self.permlane:
            W = R[0] | R[1]; Rd = R[0] | R[1]
        elif self.valu:
            W = set(R[0])
            start = 1
            if "_co_" in op or op.startswith("v_div_scale") or op.startswith("v_mad_u64"):
                W |= R[1]; start = 2
            for r in R[start:]:
                Rd |= r
            if op.startswith("v_fmac") or op.startswith("v_dot2c") or op.startswith("v_pk_fmac") or self.dpp:
                Rd |= R[0]
            if op.startswith("v_cndmask") and len(ops) == 3:
                Rd |= {("s", "vcc")}
            if op.startswith("v_cmpx"):
                W |= {("s", "exec")}
            if op.startswith("v_div_fmas"):
                Rd |= {("s", "vcc")}
        elif self.vmem:
            if "load" in op:
                if " lds" in " " + mods or "_lds_" in op:
                    for r in R: Rd |= r
                    Rd |= {("s", "m0")}
                else:
                    W = R[0]
                    for r in R[1:]: Rd |= r
            elif "atomic" in op:
                for r in R: Rd |= r
                if "sc0" in mods:
                    W = R[0] if op.startswith("buffer") else R[0]
            elif "store" in op:
                for r in R: Rd |= r
                if "x4" in op or "x3" in op:
                    self.store_wide = R[0] if op.startswith("buffer") else R[1]
        elif self.ds:
            if op.startswith("ds_read") or "permute" in op or op.startswith("ds_swizzle") or "_rtn" in op:
                W = R[0]
                for r in R[1:]: Rd |= r
            else:
                for r in R: Rd |= r
        elif self.salu:
            if op.startswith("s_cmp") or op.startswith("s_cbranch") or op in ("s_branch", "s_waitcnt", "s_barrier", "s_nop", "s_endpgm", "s_sleep", "s_setprio"):
                for r in R: Rd |= r
            else:
                if R:
                    W = R[0]
                for r in R[1:]: Rd |= r
                if "saveexec" in op:
                    W = W | {("s", "exec")}
        self.W = W; self.R = Rd

def vg(s):
    return {r for r in s if r[0] in ("v", "a")}
def sg(s):
    return {r for r in s if r[0] == "s"}

def need(prev, cur):
    n = 0
    if prev.valu:
        wv = vg(prev.W); wsg = sg(prev.W)
        if cur.mfma and wv & cur.R: n = max(n, 2)
        if cur.valu and cur.dpp and wv & cur.R: n = max(n, 2)
        if cur.permlane and wv & cur.R: n = max(n, 2)
        if cur.readlane and wv & cur.R: n = max(n, 1)
        if prev.trans and cur.valu and not cur.trans and wv & (cur.R | cur.W): n = max(n, 1)
        if prev.trans and (cur.vmem or cur.ds) and wv & cur.R: n = max(n, 1)
        if wsg:
            if cur.valu and wsg & cur.R: n = max(n, 4 if cur.readlane else 2)
            if cur.vmem and wsg & cur.R: n = max(n, 5)
            if cur.salu and wsg & cur.R: n = max(n, 2)
            if ("s", "exec") in wsg and (cur.dpp): n = max(n, 5)
            if ("s", "exec") in wsg and (cur.mfma or cur.readlane or cur.permlane): n = max(n, 4)
            if ("s", "vcc") in wsg and cur.op.startswith("v_div_fmas"): n = max(n, 4)
            if ("s", "vcc") in wsg and cur.op.startswith("s_cbranch_vcc"): n = max(n, 5)
    if prev.mfma:
        p = prev.passes
        far = {4: 8, 8: 12}[p]
        if cur.mfma:
            if prev.W & (cur.A | cur.B): n = max(n, far)
            if prev.W & cur.C and prev.W != cur.C: n = max(n, {4: 6, 8: 10}[p])
            if prev.W & cur.W and prev.W != cur.C and not (prev.W & cur.C): n = max(n, far)
        elif cur.valu or cur.vmem or cur.ds:
            if prev.W & (cur.R | cur.W): n = max(n, far)
            if cur.valu and vg(prev.C) & cur.W: n = max(n, {4: 3, 8: 7}[p])
    if prev.store_wide:
        if prev.store_wide & cur.W: n = max(n, 2 if cur.valu else 1)
    if prev.salu and ("s", "m0") in prev.W and ("s", "m0") in cur.R: n = max(n, 1)
    if prev.salu and ("s", "exec") in prev.W and (cur.dpp or cur.permlane or cur.readlane): n = max(n, 1)
    return n

class Asm:
    def __init__(self):
        self.lines = []
    def __call__(self, text):
        for t in text.split("\n"):
            t = t.strip()
            if t:
                self.lines.append(t)
    def finalize(self, loops=()):
        ins = [Ins(t) for t in self.lines]
        out = []
        hist = []
        label_pos = {}
        def dist_need(history, cur):
            d = 0; req = 0
            for p in reversed(history):
                r = need(p, cur)
                if r > d:
                    req = max(req, r - d)
                d += p.states
                if d >= 20: break
            return req
        for k, i in enumerate(ins):
            if i.op is None:
                out.append(i)
                if i.label: label_pos[i.text.split(":")[0].strip()] = len(out)
                continue
            req = dist_need(hist, i)
            if req > 0:
                nop = Ins(f"s_nop {req-1}")
                out.append(nop); hist.append(nop)
            if i.op.startswith("s_cbranch") or i.op == "s_branch":
                tgt = i.ops[0]
                tl = None
                for kk, j in enumerate(ins):
                    if j.label and j.text.split(":")[0].strip() == tgt:
                        tl = kk; break
                assert tl is not None, tgt
                follow = [j for j in ins[tl + 1: tl + 40] if j.op is not None][:20]
                extra = 0
                h2 = hist + [i]
                d_after = 0
                for j in follow:
                    d = d_after; req = 0
                    for p in reversed(h2):
                        r = need(p, j)
                        if r > d: req = max(req, r - d)
                        d += p.states
                        if d >= 20: break
                    extra = max(extra, req)
                    d_after += j.states
                    if d_after >= 20: break
                if extra > 0:
                    nop = Ins(f"s_nop {extra-1}")
                    out.append(nop); hist.append(nop)
            out.append(i); hist.append(i)
        res = []
        for i in out:
            if i.op is None:
                res.append(i.text)
            else:
                res.append("  " + i.text)
        return "\n".join(res) + "\n"
```

```python
import sys, struct
from asmlib import Asm
KN = "recurrent_scan__mha_block_cached__swiglu_ffn__decode_kernel"
HDR = open("recurrent_scan__mha_block_cached__swiglu_ffn__decode.s.ref").read().split("; Override launch")[0]

def f32(x):
    return "0x%08x" % struct.unpack("<I", struct.pack("<f", x))[0]
LOG2E = f32(1.4426950408889634)
SCALE = f32(128 ** -0.5)

Y_OFF = 0
ML_OFF = 512 * 1024
FF_OFF = 1024 * 1024
WS_BYTES = 4 * 1024 * 1024
TS_OFF = 3 * 1024 * 1024
XN = 0; QP = 4096; FP = 8192; QW = 12288; DUMMY = 14336; OP = 16384; MLP = 20480; YP = 24576
LDS_BYTES = YP + 32768

def vr(a, n=4):
    return f"v[{a}:{a+n-1}]"

def allreduce_add(A, x, t):
    A(f"v_add_f32_dpp v{x}, v{x}, v{x} quad_perm:[1,0,3,2] row_mask:0xf bank_mask:0xf")
    A(f"v_add_f32_dpp v{x}, v{x}, v{x} quad_perm:[2,3,0,1] row_mask:0xf bank_mask:0xf")
    A(f"v_add_f32_dpp v{x}, v{x}, v{x} row_half_mirror row_mask:0xf bank_mask:0xf")
    A(f"v_add_f32_dpp v{x}, v{x}, v{x} row_mirror row_mask:0xf bank_mask:0xf")
    rows(A, "v_add_f32", x, t)

def rows(A, op, x, t):
    A(f"v_mov_b32 v{t}, v{x}")
    A(f"v_permlane16_swap_b32 v{t}, v{x}")
    A(f"{op} v{x}, v{t}, v{x}")
    A(f"v_mov_b32 v{t}, v{x}")
    A(f"v_permlane32_swap_b32 v{t}, v{x}")
    A(f"{op} v{x}, v{t}, v{x}")

def srd(A, d, lo, nbytes, add=None):
    if add is None:
        A(f"s_mov_b32 s{d}, s{lo}"); A(f"s_mov_b32 s{d+1}, s{lo+1}")
    else:
        A(f"s_add_u32 s{d}, s{lo}, {add}"); A(f"s_addc_u32 s{d+1}, s{lo+1}, 0")
    A(f"s_mov_b32 s{d+2}, {nbytes}"); A(f"s_mov_b32 s{d+3}, 0x00020000")

def gen(ts=False, round_scores=True, wpol="", kvpol="nt"):
    A = Asm()
    RING = 128
    def Kb(b, m): return RING + 32 * b + 4 * m
    def Vb(b, t): return RING + 32 * b + 16 + 4 * t
    nts = [0]
    def stamp():
        if ts:
            A(f"s_memrealtime s[{80+2*nts[0]}:{81+2*nts[0]}]")
            nts[0] += 1
    def issueK(b):
        for m in range(4):
            A(f"buffer_load_dwordx4 {vr(Kb(b,m))}, v2, s[8:11], 0 offen offset:{64*m} {kvpol}")
        A("v_add_u32 v2, 0x8000, v2")
    def issueV(b):
        for t in range(4):
            A(f"buffer_load_dwordx4 {vr(Vb(b,t))}, v3, s[12:15], 0 offen offset:{1024*t} {kvpol}")
        A("v_add_u32 v3, 0x8000, v3")

    A(f"{KN}:")
    stamp()
    A("s_cmp_ge_u32 s2, 256")
    A("s_cbranch_scc1 L_end")
    A("s_load_dwordx16 s[36:51], s[0:1], 0")
    A("s_load_dwordx2 s[52:53], s[0:1], 64")
    A("s_load_dwordx2 s[54:55], s[0:1], 88")
    A("v_lshrrev_b32 v10, 6, v0")
    A("v_and_b32 v1, 63, v0")
    A("v_readfirstlane_b32 s3, v10")
    A("s_and_b32 s4, s2, 7")
    A("s_lshr_b32 s5, s2, 3")
    A("s_and_b32 s6, s5, 3")
    A("s_lshl_b32 s64, s4, 2")
    A("s_add_u32 s64, s64, s6")
    A("s_lshr_b32 s65, s5, 3")
    A("s_bfe_u32 s6, s5, 0x10002")
    A("s_lshl_b32 s66, s65, 5")
    A("s_add_u32 s66, s66, s64")
    A("s_lshl_b32 s66, s66, 1")
    A("s_add_u32 s66, s66, s6")
    A("s_min_u32 s6, s5, 27")
    A("s_mul_i32 s67, s4, 28")
    A("s_add_u32 s67, s67, s6")
    A("s_mov_b32 s68, s5")
    A("s_lshl_b32 s7, s66, 20")
    A("v_and_b32 v11, 15, v1")
    A("v_lshrrev_b32 v12, 4, v1")
    A("v_and_b32 v13, 3, v1")
    A("v_lshlrev_b32 v13, 10, v13")
    A("v_bfe_u32 v14, v1, 2, 2")
    A("v_lshlrev_b32 v14, 8, v14")
    A("v_lshlrev_b32 v15, 4, v12")
    A("v_add3_u32 v2, v13, v14, v15")
    A("v_lshlrev_b32 v10, 12, v10")
    A("v_add_u32 v2, v2, v10")
    A("v_lshl_add_u32 v3, v1, 4, v10")
    A("s_and_b32 s4, s3, 3")
    A("s_lshl_b32 s4, s4, 10")
    A("v_lshlrev_b32 v56, 4, v1")
    A("s_waitcnt lgkmcnt(0)")
    srd(A, 8, 38, 1 << 20, add="s7")
    srd(A, 12, 40, 1 << 20, add="s7")
    srd(A, 56, 36, 4096)
    A("buffer_load_dwordx4 v[64:67], v56, s[56:59], s4 offen")
    issueK(0); issueV(0)
    srd(A, 16, 42, 512 * 4096 * 2)
    A("v_lshlrev_b32 v57, 17, v12")
    A("v_lshl_add_u32 v57, v11, 4, v57")
    A("s_lshl_b32 s4, s3, 19")
    A("s_lshl_b32 s5, s64, 8")
    A("s_add_u32 s4, s4, s5")
    for t in range(16):
        A(f"buffer_load_dwordx4 {vr(192+4*t)}, v57, s[16:19], s4 offen {wpol}")
        if t < 15: A("s_add_u32 s4, s4, 8192")
    srd(A, 24, 48, 512 * 1792 * 2)
    srd(A, 28, 50, 512 * 1792 * 2)
    srd(A, 32, 52, 1792 * 512 * 2)
    A("v_lshrrev_b32 v58, 3, v11")
    A("v_lshlrev_b32 v58, 2, v58")
    A("v_add_u32 v58, v58, v12")
    A("v_mul_u32_u24 v58, 28672, v58")
    A("v_and_b32 v59, 7, v11")
    A("v_lshl_add_u32 v58, v59, 1, v58")
    A(f"s_mul_i32 s4, s3, {64*3584}")
    A("s_lshl_b32 s5, s67, 4")
    A("s_add_u32 s4, s4, s5")
    for e in range(8):
        A(f"buffer_load_ushort v{72+e}, v58, s[24:27], s4 offen {wpol}")
        A(f"buffer_load_ushort v{80+e}, v58, s[28:31], s4 offen {wpol}")
        if e < 7: A("s_add_u32 s4, s4, 3584")
    A("v_lshlrev_b32 v59, 10, v12")
    A("v_lshl_add_u32 v59, v11, 4, v59")
    A("s_lshl_b32 s4, s67, 13")
    A("s_and_b32 s5, s3, 3")
    A("s_lshl_b32 s5, s5, 8")
    A("s_add_u32 s4, s4, s5")
    A(f"buffer_load_dwordx4 v[88:91], v59, s[32:35], s4 offen {wpol}")
    A("s_add_u32 s4, s4, 4096")
    A(f"buffer_load_dwordx4 v[92:95], v59, s[32:35], s4 offen {wpol}")
    issueK(1); issueV(1)
    srd(A, 20, 44, 4096 * 512 * 2)
    srd(A, 60, 54, WS_BYTES)
    A(f"s_mov_b32 s70, {LOG2E}")
    A(f"s_mov_b32 s71, {SCALE}")
    A("s_mov_b32 s72, 0x01000100")
    A("s_mov_b32 s73, 0x03020302")
    A("v_and_b32 v13, 1, v1")
    A("v_lshlrev_b32 v13, 4, v13")
    A("v_mov_b32 v14, 0xffff")
    A("v_lshlrev_b32 v14, v13, v14")
    A("v_bfe_u32 v13, v1, 1, 2")
    for r in range(4):
        A(f"v_cmp_eq_u32 vcc, {r}, v13")
        A(f"v_cndmask_b32 v{4+r}, 0, v14, vcc")
    stamp()
    A("s_waitcnt vmcnt(50)")
    stamp()
    for k in range(4):
        A(f"v_lshlrev_b32 v{96+2*k}, 16, v{64+k}")
        A(f"v_and_b32 v{97+2*k}, 0xffff0000, v{64+k}")
    A("v_add_f32 v104, v96, v97"); A("v_add_f32 v105, v98, v99"); A("v_add_f32 v106, v100, v101"); A("v_add_f32 v107, v102, v103")
    A("v_add_f32 v104, v104, v105"); A("v_add_f32 v106, v106, v107"); A("v_add_f32 v104, v104, v106")
    allreduce_add(A, 104, 105)
    A(f"v_mul_f32 v104, {f32(1/512)}, v104")
    for k in range(8):
        A(f"v_sub_f32 v{108+k}, v{96+k}, v104")
    A("v_mul_f32 v106, v108, v108")
    for k in range(1, 8):
        A(f"v_fmac_f32 v106, v{108+k}, v{108+k}")
    allreduce_add(A, 106, 105)
    A(f"v_mul_f32 v106, {f32(1/512)}, v106")
    A("v_cvt_pk_bf16_f32 v104, 0, v104")
    A("v_cvt_pk_bf16_f32 v106, 0, v106")
    A(f"v_add_f32 v106, {f32(1e-5)}, v106")
    A("v_cvt_pk_bf16_f32 v106, 0, v106")
    A("v_sqrt_f32 v106, v106")
    A("v_cvt_pk_bf16_f32 v106, 0, v106")
    A("v_rcp_f32 v107, v106")
    for k in range(8):
        A(f"v_sub_f32 v{108+k}, v{96+k}, v104")
    for k in range(8):
        A(f"v_cvt_pk_bf16_f32 v{108+k}, 0, v{108+k}")
    for k in range(8):
        A(f"v_mul_f32 v{96+k}, v{108+k}, v107")
    for k in range(8):
        A(f"v_fma_f32 v{108+k}, -v{96+k}, v106, v{108+k}")
    for k in range(8):
        A(f"v_fmac_f32 v{96+k}, v{108+k}, v107")
    for k in range(4):
        A(f"v_cvt_pk_bf16_f32 v{64+k}, v{96+2*k}, v{97+2*k}")
    A("s_and_b32 s4, s3, 3")
    A("s_lshl_b32 s4, s4, 10")
    A("v_add_u32 v57, s4, v56")
    A(f"ds_write_b128 v57, v[64:67] offset:{XN}")
    A("s_waitcnt lgkmcnt(0)")
    A("s_barrier")
    stamp()
    A("s_lshl_b32 s4, s65, 10")
    A("s_lshl_b32 s5, s3, 7")
    A("s_add_u32 s4, s4, s5")
    A("v_lshlrev_b32 v57, 5, v12")
    A("v_add_u32 v57, s4, v57")
    A(f"ds_read_b128 v[96:99], v57 offset:{XN}")
    A(f"ds_read_b128 v[100:103], v57 offset:{XN+16}")
    A("v_and_b32 v57, 3, v11")
    A("v_lshlrev_b32 v57, 10, v57")
    A("v_bfe_u32 v58, v11, 2, 1")
    A("v_lshl_add_u32 v57, v58, 6, v57")
    A("v_lshl_add_u32 v57, v12, 4, v57")
    A("v_add_u32 v57, s5, v57")
    A(f"ds_read_b128 v[104:107], v57 offset:{XN}")
    A("s_waitcnt lgkmcnt(1)")
    for t in range(16):
        a = 40 + 4 * (t & 3)
        A(f"v_perm_b32 v58, v{96+t//2}, v{96+t//2}, s{72+(t&1)}")
        for r in range(4):
            A(f"v_and_b32 v{a+r}, v58, v{4+r}")
        A(f"s_waitcnt vmcnt({26+15-t})")
        A(f"v_mfma_f32_16x16x32_bf16 v[108:111], {vr(a)}, {vr(192+4*t)}, {'0' if t==0 else 'v[108:111]'}")
    stamp()
    issueK(2); issueV(2); issueK(3); issueV(3)
    A("v_and_b32 v57, 1, v12")
    A("v_lshlrev_b32 v57, 4, v57")
    A("v_lshl_add_u32 v60, v11, 5, v57")
    A("s_lshl_b32 s4, s3, 9")
    A("v_add_u32 v57, s4, v60")
    A(f"ds_write_b128 v57, v[108:111] offset:{QP}")
    A("s_waitcnt vmcnt(24)")
    for k in range(4):
        A(f"v_lshl_or_b32 v{72+k}, v{73+2*k}, 16, v{72+2*k}")
    for k in range(4):
        A(f"v_lshl_or_b32 v{80+k}, v{81+2*k}, 16, v{80+2*k}")
    A("s_waitcnt lgkmcnt(1)")
    A("v_mfma_f32_16x16x32_bf16 v[112:115], v[104:107], v[72:75], 0")
    A("v_mfma_f32_16x16x32_bf16 v[116:119], v[104:107], v[80:83], 0")
    A("v_and_b32 v57, 1, v12")
    A("v_lshrrev_b32 v58, 3, v11")
    A("v_cmp_eq_u32 vcc, v57, v58")
    A("v_lshlrev_b32 v57, 4, v11")
    A(f"s_add_u32 s5, s4, {FP}")
    A("v_add_u32 v57, s5, v57")
    A(f"v_mov_b32 v58, {DUMMY}")
    A("v_cndmask_b32 v57, v58, v57, vcc")
    A("ds_write_b128 v57, v[112:115]")
    A("ds_write_b128 v57, v[116:119] offset:256")
    A("s_waitcnt lgkmcnt(0)")
    A("s_barrier")
    stamp()
    A("v_lshlrev_b32 v57, 3, v1")
    for ww in range(8):
        A(f"ds_read_b64 v[{96+2*ww}:{97+2*ww}], v57 offset:{QP+ww*512}")
    A("v_lshrrev_b32 v58, 5, v1")
    A("v_lshlrev_b32 v58, 8, v58")
    A("v_and_b32 v59, 31, v1")
    A("v_lshl_add_u32 v58, v59, 2, v58")
    A("s_waitcnt lgkmcnt(0)")
    for k in range(16):
        A(f"ds_read_b32 v{112+k}, v58 offset:{FP+(k>>1)*512+(k&1)*128}")
    for st in (1, 2, 4):
        for ww in range(0, 8, 2 * st):
            A(f"v_add_f32 v{96+2*ww}, v{96+2*ww}, v{96+2*(ww+st)}")
            A(f"v_add_f32 v{97+2*ww}, v{97+2*ww}, v{97+2*(ww+st)}")
    A("v_cvt_pk_bf16_f32 v96, v96, v97")
    A("s_lshl_b32 s4, s3, 8")
    A("v_lshlrev_b32 v57, 2, v1")
    A("v_add_u32 v57, s4, v57")
    A("s_waitcnt lgkmcnt(0)")
    A(f"ds_write_b32 v57, v96 offset:{QW}")
    A("v_lshlrev_b32 v57, 4, v12")
    A("v_add_u32 v57, s4, v57")
    A("s_waitcnt lgkmcnt(0)")
    for m in range(4):
        A(f"ds_read_b128 {vr(16+4*m)}, v57 offset:{QW+64*m}")
    for st in (1, 2, 4, 8):
        for k in range(0, 16, 2 * st):
            A(f"v_add_f32 v{112+k}, v{112+k}, v{112+k+st}")
    A("v_cvt_pk_bf16_f32 v112, 0, v112")
    A("v_mov_b32 v113, v112")
    A("v_permlane32_swap_b32 v113, v112")
    A("v_mul_f32 v114, s70, v113")
    A("v_exp_f32 v114, -v114")
    A("v_add_f32 v114, 1.0, v114")
    A("v_rcp_f32 v114, v114")
    A("v_mul_f32 v113, v113, v114")
    A("v_cvt_pk_bf16_f32 v113, 0, v113")
    A("v_mul_f32 v113, v113, v112")
    A("v_cvt_pk_bf16_f32 v113, v113, v113")
    A("s_lshr_b32 s5, s3, 2")
    A("s_lshl_b32 s5, s5, 3")
    A("v_lshrrev_b32 v58, 3, v11")
    A("v_lshlrev_b32 v58, 2, v58")
    A("v_lshl_add_u32 v58, v12, 4, v58")
    A("v_add_u32 v58, s5, v58")
    A("v_add_u32 v59, 64, v58")
    A("ds_bpermute_b32 v114, v58, v113")
    A("ds_bpermute_b32 v115, v59, v113")
    A("s_waitcnt lgkmcnt(0)")
    for r in range(4):
        A(f"v_and_b32 v{40+r}, v114, v{4+r}")
    for r in range(4):
        A(f"v_and_b32 v{44+r}, v115, v{4+r}")
    A("v_mfma_f32_16x16x32_bf16 v[116:119], v[40:43], v[88:91], 0")
    A("v_mfma_f32_16x16x32_bf16 v[116:119], v[44:47], v[92:95], v[116:119]")
    A("v_lshrrev_b32 v57, 1, v12")
    A("v_lshl_add_u32 v57, v57, 11, v60")
    A("s_lshl_b32 s4, s67, 13")
    A("s_lshr_b32 s5, s3, 2")
    A("s_lshl_b32 s5, s5, 12")
    A("s_add_u32 s4, s4, s5")
    A("s_and_b32 s5, s3, 3")
    A("s_lshl_b32 s5, s5, 9")
    A("s_add_u32 s4, s4, s5")
    A(f"s_add_u32 s4, s4, {FF_OFF}")
    A("s_cmp_ge_u32 s68, 28")
    A("s_cbranch_scc1 L_noff")
    A("buffer_store_dwordx4 v[116:119], v57, s[60:63], s4 offen sc0 sc1")
    A("L_noff:")
    A("v_lshlrev_b32 v57, 12, v12")
    A("v_lshl_add_u32 v57, v11, 4, v57")
    A("s_lshl_b32 s4, s64, 17")
    A("s_lshl_b32 s5, s3, 14")
    A("s_add_u32 s4, s4, s5")
    A("s_nop 1")
    for t in range(4):
        for c in range(4):
            A(f"buffer_load_dwordx4 {vr(64+16*t+4*c)}, v57, s[20:23], s4 offen offset:{t*1024+c*256} {wpol}")
    A("v_mov_b32 v8, 0xff800000")
    A("v_mov_b32 v9, 0")
    for r in range(4):
        A(f"v_mov_b32 v{36+r}, 0")
    A("s_mov_b32 s69, 8")
    A("s_waitcnt lgkmcnt(0)")
    stamp()
    A("L_loop:")
    for b in range(4):
        A("s_waitcnt vmcnt(28)")
        for m in range(4):
            A(f"v_mfma_f32_16x16x32_bf16 v[32:35], {vr(Kb(b,m))}, {vr(16+4*m)}, {'0' if m==0 else 'v[32:35]'}")
        issueK(b)
        if round_scores:
            for k in range(4):
                A(f"v_cvt_pk_bf16_f32 v{56+k}, 0, v{32+k}")
            for k in range(4):
                A(f"v_mul_f32 v{56+k}, s71, v{56+k}")
            for k in range(4):
                A(f"v_cvt_pk_bf16_f32 v{56+k}, 0, v{56+k}")
        else:
            for k in range(4):
                A(f"v_mul_f32 v{56+k}, s71, v{32+k}")
        A("v_max3_f32 v10, v56, v57, v58")
        A("v_max3_f32 v10, v10, v59, v8")
        rows(A, "v_max_f32", 10, 13)
        A("v_sub_f32 v13, v8, v10")
        A("v_mul_f32 v14, s70, v10")
        A("v_mul_f32 v13, s70, v13")
        A("v_mov_b32 v8, v10")
        for k in range(4):
            A(f"v_fma_f32 v{56+k}, v{56+k}, s70, -v14")
        A("v_exp_f32 v13, v13")
        for k in range(4):
            A(f"v_exp_f32 v{56+k}, v{56+k}")
        for r in range(4):
            A(f"v_mul_f32 v{36+r}, v13, v{36+r}")
        A("v_fma_f32 v9, v9, v13, v56")
        A("v_add_f32 v14, v57, v58")
        A("v_add_f32 v9, v9, v59")
        A("v_add_f32 v9, v9, v14")
        for k in range(4):
            A(f"v_cvt_pk_bf16_f32 v{56+k}, v{56+k}, v{56+k}")
        for k in range(4):
            for r in range(4):
                A(f"v_and_b32 v{40+4*k+r}, v{56+k}, v{4+r}")
        A("s_waitcnt vmcnt(28)")
        for t in range(4):
            A(f"v_mfma_f32_16x16x32_bf16 v[36:39], {vr(40+4*t)}, {vr(Vb(b,t))}, v[36:39]")
        issueV(b)
    A("s_sub_u32 s69, s69, 1")
    A("s_cmp_lg_u32 s69, 0")
    A("s_cbranch_scc1 L_loop")
    stamp()
    rows(A, "v_add_f32", 9, 13)
    A("s_lshl_b32 s4, s3, 9")
    A("v_add_u32 v57, s4, v60")
    A(f"ds_write_b128 v57, v[36:39] offset:{OP}")
    A("s_lshl_b32 s5, s3, 3")
    A("v_mov_b32 v57, s5")
    A(f"ds_write_b64 v57, v[8:9] offset:{MLP}")
    A("s_waitcnt vmcnt(0) lgkmcnt(0)")
    A("s_barrier")
    stamp()
    A("v_mov_b32 v57, 0")
    for k in range(4):
        A(f"ds_read_b128 {vr(128+4*k)}, v57 offset:{MLP+16*k}")
    A("s_lshl_b32 s4, s3, 6")
    A("v_lshlrev_b32 v57, 4, v12")
    A("v_add_u32 v57, s4, v57")
    for ww in range(8):
        A(f"ds_read_b128 {vr(160+4*ww)}, v57 offset:{OP+ww*512}")
    A("s_waitcnt lgkmcnt(8)")
    A("v_max3_f32 v10, v128, v130, v132")
    A("v_max3_f32 v10, v10, v134, v136")
    A("v_max3_f32 v10, v10, v138, v140")
    A("v_max_f32 v10, v10, v142")
    for ww in range(8):
        A(f"v_sub_f32 v{128+2*ww}, v{128+2*ww}, v10")
    for ww in range(8):
        A(f"v_mul_f32 v{128+2*ww}, s70, v{128+2*ww}")
    for ww in range(8):
        A(f"v_exp_f32 v{128+2*ww}, v{128+2*ww}")
    A("v_mul_f32 v13, v128, v129")
    for ww in range(1, 8):
        A(f"v_fmac_f32 v13, v{128+2*ww}, v{129+2*ww}")
    A("v_rcp_f32 v14, v13")
    A("s_waitcnt lgkmcnt(0)")
    for t in range(4):
        A(f"v_mul_f32 v{56+t}, v128, v{160+t}")
    for ww in range(1, 8):
        for t in range(4):
            A(f"v_fmac_f32 v{56+t}, v{128+2*ww}, v{160+4*ww+t}")
    A("v_cmp_gt_u32 vcc, 8, v11")
    for t in range(4):
        A(f"v_mul_f32 v{56+t}, v14, v{56+t}")
    for t in range(4):
        A(f"v_cvt_pk_bf16_f32 v{144+t}, 0, v{56+t}")
    for t in range(4):
        A(f"v_sub_f32 v{144+t}, v{56+t}, v{144+t}")
    for t in range(4):
        A(f"v_cndmask_b32 v{56+t}, v{144+t}, v{56+t}, vcc")
    for t in range(4):
        A(f"v_cvt_pk_bf16_f32 v{56+t}, v{56+t}, v{56+t}")
    for t in range(4):
        for r in range(4):
            A(f"v_and_b32 v{40+4*t+r}, v{56+t}, v{4+r}")
    for t in range(4):
        for c in range(4):
            d = vr(192 + 4 * c)
            A(f"v_mfma_f32_16x16x32_bf16 {d}, {vr(40+4*t)}, {vr(64+16*t+4*c)}, {'0' if t==0 else d}")
    A("v_lshrrev_b32 v57, 1, v12")
    A("v_lshl_add_u32 v57, v57, 11, v60")
    A("s_lshl_b32 s4, s3, 12")
    A("v_add_u32 v57, s4, v57")
    for c in range(4):
        A(f"ds_write_b128 v57, {vr(192+4*c)} offset:{YP+c*512}")
    A("v_lshlrev_b32 v58, 2, v0")
    A("s_waitcnt lgkmcnt(0)")
    A("s_barrier")
    for k in range(16):
        A(f"ds_read_b32 v{128+k}, v58 offset:{YP+k*2048}")
    A("v_mov_b32 v11, v13")
    A("s_lshl_b32 s4, s66, 3")
    A(f"s_add_u32 s4, s4, {ML_OFF}")
    A("s_lshl_b32 s5, s66, 11")
    A("v_cmp_eq_u32 vcc, 0, v0")
    A("s_and_saveexec_b64 s[76:77], vcc")
    A("s_cbranch_execz L_noml")
    A("buffer_store_dwordx2 v[10:11], v0, s[60:63], s4 offen")
    A("L_noml:")
    A("s_mov_b64 exec, s[76:77]")
    A("s_waitcnt lgkmcnt(0)")
    for st in (1, 2, 4, 8):
        for k in range(0, 16, 2 * st):
            A(f"v_add_f32 v{128+k}, v{128+k}, v{128+k+st}")
    A("buffer_store_dword v128, v58, s[60:63], s5 offen")
    if ts:
        A("s_waitcnt vmcnt(0)")
        stamp()
        A("s_waitcnt lgkmcnt(0)")
        n = nts[0]
        for k in range(n):
            A(f"v_mov_b32 v{128+k}, s{80+2*k}")
        for k in range(n, 12):
            A(f"v_mov_b32 v{128+k}, 0")
        A("s_getreg_b32 s4, hwreg(HW_REG_XCC_ID)")
        A("v_mov_b32 v139, s4")
        A("s_lshl_b32 s4, s2, 3")
        A("s_add_u32 s4, s4, s3")
        A("s_lshl_b32 s4, s4, 6")
        A(f"s_add_u32 s4, s4, {TS_OFF}")
        A("v_mov_b32 v58, 0")
        A("v_cmp_eq_u32 vcc, 0, v1")
        A("s_and_saveexec_b64 s[76:77], vcc")
        for k in range(3):
            A(f"buffer_store_dwordx4 {vr(128+4*k)}, v58, s[60:63], s4 offen offset:{16*k}")
    A("L_end:")
    A("s_endpgm")
    k1 = A.finalize()

    B = Asm()
    B("fin_kernel:")
    B("s_cmp_ge_u32 s2, 256")
    B("s_cbranch_scc1 L_fend")
    B("s_load_dwordx2 s[4:5], s[0:1], 0")
    B("s_load_dwordx2 s[6:7], s[0:1], 72")
    B("s_load_dwordx2 s[20:21], s[0:1], 88")
    B("s_and_b32 s22, s2, 7")
    B("s_lshr_b32 s23, s2, 5")
    B("s_lshl_b32 s23, s23, 3")
    B("s_add_u32 s23, s23, s22")
    B("s_lshr_b32 s24, s23, 4")
    B("s_and_b32 s23, s23, 15")
    B("s_lshl_b32 s23, s23, 5")
    B("s_bfe_u32 s22, s2, 0x20003")
    B("s_lshl_b32 s22, s22, 3")
    B("s_add_u32 s23, s23, s22")
    B("v_lshrrev_b32 v1, 1, v0")
    B("v_and_b32 v2, 1, v0")
    B("v_lshlrev_b32 v3, 4, v2")
    B("v_lshl_add_u32 v4, v1, 11, v3")
    B("v_lshl_add_u32 v5, v1, 13, v3")
    B("v_lshrrev_b32 v6, 2, v0")
    B("v_lshlrev_b32 v6, 4, v6")
    B("v_lshlrev_b32 v7, 3, v2")
    B("s_lshl_b32 s25, s24, 17")
    B("s_lshl_b32 s26, s23, 2")
    B("s_add_u32 s25, s25, s26")
    B("s_add_u32 s27, s25, 65536")
    B("s_lshl_b32 s28, s24, 9")
    B(f"s_add_u32 s28, s28, {ML_OFF}")
    B("s_lshl_b32 s29, s24, 11")
    B("s_add_u32 s29, s29, s26")
    B(f"s_add_u32 s29, s29, {FF_OFF}")
    B("s_lshl_b32 s30, s24, 10")
    B("s_lshl_b32 s31, s23, 1")
    B("s_add_u32 s30, s30, s31")
    B(f"s_mov_b32 s33, {LOG2E}")
    B("s_waitcnt lgkmcnt(0)")
    srd(B, 8, 20, WS_BYTES)
    B("buffer_load_dwordx4 v[8:11], v6, s[8:11], s28 offen")
    B("buffer_load_dwordx4 v[12:15], v6, s[8:11], s28 offen offset:256")
    B("buffer_load_dwordx4 v[16:19], v4, s[8:11], s25 offen")
    B("buffer_load_dwordx4 v[20:23], v4, s[8:11], s27 offen")
    for i in range(7):
        B(f"buffer_load_dwordx4 {vr(24+4*i)}, v5, s[8:11], s29 offen")
        if i < 6: B(f"s_add_u32 s29, s29, {32*8192}")
    srd(B, 12, 4, 4096)
    srd(B, 16, 6, 4096)
    B("buffer_load_dwordx2 v[52:53], v7, s[12:15], s30 offen")
    B("v_and_b32 v54, 1, v1")
    B("v_cmp_eq_u32 vcc, 1, v54")
    B("s_waitcnt vmcnt(10)")
    for base, w in ((8, 55), (12, 56)):
        B(f"v_max_f32 v57, v{base}, v{base+2}")
        B(f"v_sub_f32 v{base}, v{base}, v57")
        B(f"v_sub_f32 v{base+2}, v{base+2}, v57")
        B(f"v_mul_f32 v{base}, s33, v{base}")
        B(f"v_mul_f32 v{base+2}, s33, v{base+2}")
        B(f"v_exp_f32 v{base}, v{base}")
        B(f"v_exp_f32 v{base+2}, v{base+2}")
        B(f"v_mul_f32 v{base}, v{base}, v{base+1}")
        B(f"v_mul_f32 v{base+2}, v{base+2}, v{base+3}")
        B(f"v_add_f32 v57, v{base}, v{base+2}")
        B("v_rcp_f32 v57, v57")
        B(f"v_cndmask_b32 v{w}, v{base}, v{base+2}, vcc")
        B(f"v_mul_f32 v{w}, v{w}, v57")
    B("s_waitcnt vmcnt(8)")
    for k in range(4):
        B(f"v_mul_f32 v{16+k}, v55, v{16+k}")
    for k in range(4):
        B(f"v_fmac_f32 v{16+k}, v56, v{20+k}")
    B("s_waitcnt vmcnt(1)")
    for k in range(4):
        B(f"v_add_f32 v{20+k}, v{24+k}, v{28+k}")
        B(f"v_add_f32 v{32+k}, v{32+k}, v{36+k}")
        B(f"v_add_f32 v{40+k}, v{40+k}, v{44+k}")
    for k in range(4):
        B(f"v_add_f32 v{20+k}, v{20+k}, v{32+k}")
        B(f"v_add_f32 v{40+k}, v{40+k}, v{48+k}")
    for k in range(4):
        B(f"v_add_f32 v{20+k}, v{20+k}, v{40+k}")
    for rot in (2, 4, 8):
        for k in range(8):
            B(f"v_add_f32_dpp v{16+k}, v{16+k}, v{16+k} row_ror:{rot} row_mask:0xf bank_mask:0xf")
    for sw in ("16", "32"):
        for k in range(8):
            B(f"v_mov_b32 v{24+k}, v{16+k}")
        for k in range(8):
            B(f"v_permlane{sw}_swap_b32 v{24+k}, v{16+k}")
        for k in range(8):
            B(f"v_add_f32 v{16+k}, v{24+k}, v{16+k}")
    for k in range(8):
        B(f"v_cvt_pk_bf16_f32 v{16+k}, 0, v{16+k}")
    for k in range(4):
        B(f"v_mul_f32 v{24+k}, s33, v{20+k}")
    for k in range(4):
        B(f"v_exp_f32 v{24+k}, -v{24+k}")
    for k in range(4):
        B(f"v_add_f32 v{24+k}, 1.0, v{24+k}")
    for k in range(4):
        B(f"v_rcp_f32 v{24+k}, v{24+k}")
    for k in range(4):
        B(f"v_mul_f32 v{20+k}, v{20+k}, v{24+k}")
    for k in range(4):
        B(f"v_cvt_pk_bf16_f32 v{20+k}, 0, v{20+k}")
    for k in range(4):
        B(f"v_mul_f32 v{16+k}, v{16+k}, v{20+k}")
    for k in range(4):
        B(f"v_cvt_pk_bf16_f32 v{16+k}, 0, v{16+k}")
    B("s_waitcnt vmcnt(0)")
    B("v_lshlrev_b32 v24, 16, v52")
    B("v_and_b32 v25, 0xffff0000, v52")
    B("v_lshlrev_b32 v26, 16, v53")
    B("v_and_b32 v27, 0xffff0000, v53")
    for k in range(4):
        B(f"v_add_f32 v{16+k}, v{16+k}, v{24+k}")
    B("v_cvt_pk_bf16_f32 v16, v16, v17")
    B("v_cvt_pk_bf16_f32 v17, v18, v19")
    B("v_cmp_gt_u32 vcc, 2, v0")
    B("s_and_saveexec_b64 s[34:35], vcc")
    B("buffer_store_dwordx2 v[16:17], v7, s[16:19], s30 offen")
    B("L_fend:")
    B("s_endpgm")
    k2 = B.finalize()

    def desc(name, nv, ns):
        return f""".amdhsa_kernel {name}
  .amdhsa_next_free_vgpr {nv}
  .amdhsa_next_free_sgpr {ns}
  .amdhsa_accum_offset {(nv+3)//4*4}
  .amdhsa_group_segment_fixed_size 0
  .amdhsa_kernarg_size 96
  .amdhsa_user_sgpr_count 2
  .amdhsa_user_sgpr_kernarg_segment_ptr 1
  .amdhsa_system_sgpr_workgroup_id_x 1
.end_amdhsa_kernel
"""
    out = HDR
    out += f"; @launch kernel={KN} grid=(256,1,1) block=(512,1,1) lds={LDS_BYTES}\n"
    out += "; @launch kernel=fin_kernel grid=(256,1,1) block=(64,1,1) lds=0\n"
    out += '.amdgcn_target "amdgcn-amd-amdhsa--gfx950"\n.text\n'
    out += f".globl {KN}\n.p2align 8\n.type {KN},@function\n" + k1
    out += ".globl fin_kernel\n.p2align 8\n.type fin_kernel,@function\n" + k2
    out += '.section .rodata,"a"\n.p2align 6\n' + desc(KN, 256, 102) + ".p2align 6\n" + desc("fin_kernel", 64, 40)
    return out

if __name__ == "__main__":
    open("k1.s", "w").write(gen())
    open("k1_ts.s", "w").write(gen(ts=True))
```
